```python
import torch

def _softmax(x, axis=-1):
    return torch.softmax(x, dim=axis)
def _gelu(x):
    return torch.nn.functional.gelu(x, approximate="tanh")
def _silu(x):
    return torch.nn.functional.silu(x)
def _sigmoid(x):
    return torch.sigmoid(x)
def _layernorm(x, axis=-1, eps=1e-5):
    m = x.mean(dim=axis, keepdim=True)
    v = x.var(dim=axis, keepdim=True, unbiased=False)
    return (x - m) / torch.sqrt(v + eps)
def _scatter_add(tgt, idx, src, axis=0):
    return tgt.clone().index_add_(axis, idx, src)
def _segment_sum(src, seg, n):
    out = torch.zeros((n,) + src.shape[1:], dtype=src.dtype)
    return out.index_add_(0, seg, src)
def _pad(x, pw):
    flat = tuple(v for pair in reversed(pw) for v in pair)
    return torch.nn.functional.pad(x, flat)

kernel_name = 'concat_heads__gqa_block_cached__mha_block_cached__near_ridge'

def setup_inputs():

    _w = (lambda a: (lambda t: t.to(torch.bfloat16) if t.is_floating_point() else t)(torch.as_tensor(a)))
    def _A_setup():
        B, Sq, D = 32, 32, 448
        Hq, Hkv, Sk, Dh = 16, 8, 32, 256
        assert Hq % Hkv == 0, (Hq, Hkv)
        return {
            "x": _w((lambda *s: torch.randn(*s, dtype=torch.bfloat16) * 0.8)(B, Sq, D)),
            "k_cache": _w((lambda *s: torch.randn(*s, dtype=torch.bfloat16) * 0.8)(B, Hkv, Sk, Dh)),
            "v_cache": _w((lambda *s: torch.randn(*s, dtype=torch.bfloat16) * 0.05)(B, Hkv, Sk, Dh)),
            "wq": _w((lambda *s: torch.randn(*s, dtype=torch.bfloat16) * 0.8)(D, Hq * Dh) * (D ** -0.5)),
            "wo": _w((lambda *s: torch.randn(*s, dtype=torch.bfloat16) * 0.05)(Hq * Dh, D) * ((Hq * Dh) ** -0.5)),
        }
    _A_in = _A_setup()

    def _B_setup():
        B, Sq, D = 32, 32, 448
        H, Sk, Dh = 16, 32, 256
        return {
            "x": _w((lambda *s: torch.randn(*s, dtype=torch.bfloat16) * 0.8)(B, Sq, D)),
            "k_cache": _w((lambda *s: torch.randn(*s, dtype=torch.bfloat16) * 0.8)(B, H, Sk, Dh)),
            "v_cache": _w((lambda *s: torch.randn(*s, dtype=torch.bfloat16) * 0.05)(B, H, Sk, Dh)),
            "wq": _w((lambda *s: torch.randn(*s, dtype=torch.bfloat16) * 0.8)(D, H * Dh) * (D ** -0.5)),
            "wo": _w((lambda *s: torch.randn(*s, dtype=torch.bfloat16) * 0.05)(H * Dh, D) * ((H * Dh) ** -0.5)),
        }
    _B_in = _B_setup()

    return {
        "A_x": _A_in["x"],
        "A_k_cache": _A_in["k_cache"],
        "A_v_cache": _A_in["v_cache"],
        "A_wq": _A_in["wq"],
        "A_wo": _A_in["wo"],
        "B_x": _B_in["x"],
        "B_k_cache": _B_in["k_cache"],
        "B_v_cache": _B_in["v_cache"],
        "B_wq": _B_in["wq"],
        "B_wo": _B_in["wo"],
    }

def reference(A_x, A_k_cache, A_v_cache, A_wq, A_wo, B_x, B_k_cache, B_v_cache, B_wq, B_wo):
    def _A_ref(x, k_cache, v_cache, wq, wo):
        B, Sq, D = x.shape
        Hq, Dh = 16, 256
        Hkv = k_cache.shape[1]
        rep = Hq // Hkv
        q = (lambda x, *d: x.permute(*d))((x @ wq).reshape(B, Sq, Hq, Dh), 0, 2, 1, 3)
        k = (lambda x, n, axis: torch.repeat_interleave(x, n, dim=axis))(k_cache, rep, axis=1)
        v = (lambda x, n, axis: torch.repeat_interleave(x, n, dim=axis))(v_cache, rep, axis=1)
        scores = torch.einsum("bhqd,bhkd->bhqk", q, k) * (Dh ** -0.5)
        p = _softmax(scores, axis=-1)
        o = torch.einsum("bhqk,bhkd->bhqd", p, v)
        return (lambda x, *d: x.permute(*d))(o, 0, 2, 1, 3).reshape(B, Sq, Hq * Dh) @ wo

    def _B_ref(x, k_cache, v_cache, wq, wo):
        B, Sq, D = x.shape
        H, Dh = 16, 256
        q = (lambda x, *d: x.permute(*d))((x @ wq).reshape(B, Sq, H, Dh), 0, 2, 1, 3)
        scores = torch.einsum("bhqd,bhkd->bhqk", q, k_cache) * (Dh ** -0.5)
        p = _softmax(scores, axis=-1)
        o = torch.einsum("bhqk,bhkd->bhqd", p, v_cache)
        return (lambda x, *d: x.permute(*d))(o, 0, 2, 1, 3).reshape(B, Sq, H * Dh) @ wo

    a = _A_ref(A_x, A_k_cache, A_v_cache, A_wq, A_wo)
    b = _B_ref(B_x, B_k_cache, B_v_cache, B_wq, B_wo)
    return torch.concatenate([a, b], axis=-1)
```

```python
import re

def R(kind, n, cnt=1):
    return f"{kind}{n}" if cnt == 1 else f"{kind}[{n}:{n+cnt-1}]"
def v(n, cnt=1): return R("v", n, cnt)
def a(n, cnt=1): return R("a", n, cnt)
def s(n, cnt=1): return R("s", n, cnt)

_reg_re = re.compile(r"\b([vas])(\d+)\b|\b([vas])\[(\d+):(\d+)\]|\b(m0|vcc|exec|scc)\b")
def regs_of(txt):
    out = []
    for m in _reg_re.finditer(txt):
        if m.group(1): out.append((m.group(1), int(m.group(2))))
        elif m.group(3): out += [(m.group(3), i) for i in range(int(m.group(4)), int(m.group(5)) + 1)]
        else: out.append((m.group(6), 0))
    return out

TRANS = ("v_exp_f32", "v_rcp_f32", "v_log_f32", "v_rsq_f32", "v_sqrt_f32")

class Ins:
    __slots__ = ("text", "kind", "defs", "uses", "srcc", "targets", "done", "comment", "extra", "expect")
    def __init__(self, text, kind, defs=(), uses=(), srcc=()):
        self.text = text; self.kind = kind
        self.defs = set(defs); self.uses = set(uses); self.srcc = set(srcc)
        self.targets = None; self.comment = None; self.extra = 0; self.expect = None
    def op(self): return self.text.split()[0]

def parse(text):
    t = text.strip()
    op = t.split()[0]
    rest = t[len(op):]
    ops = [o.strip() for o in rest.split(",")] if rest.strip() else []
    def rg(i): return regs_of(ops[i]) if i < len(ops) else []
    allr = regs_of(rest)
    if op.startswith("v_mfma"):
        return Ins(t, "mfma", rg(0), rg(1) + rg(2) + rg(3), rg(3))
    if op.startswith("ds_read"):
        return Ins(t, "ldsr", rg(0), rg(1))
    if op.startswith("ds_write"):
        return Ins(t, "ldsw", (), allr)
    if op.startswith("buffer_load") or op.startswith("global_load"):
        if re.search(r"\blds\b", t) or "_lds_" in op:
            return Ins(t, "dma", (), allr + [("m0", 0)])
        return Ins(t, "vload", rg(0), [r for i in range(1, len(ops)) for r in rg(i)])
    if op.startswith("buffer_store") or op.startswith("global_store"):
        i = Ins(t, "vstore", (), allr)
        i.extra = set(rg(0) if op.startswith("buffer") else rg(1)) if op.endswith("x4") or op.endswith("x3") else set()
        return i
    if op.startswith("s_load") or op in ("s_memtime", "s_memrealtime"):
        return Ins(t, "smem", rg(0), [r for i in range(1, len(ops)) for r in rg(i)])
    if op.startswith("v_permlane"):
        return Ins(t, "valu", rg(0) + rg(1), rg(0) + rg(1))
    if op.startswith("v_cmp"):
        return Ins(t, "valu", rg(0), rg(1) + rg(2))
    if op.startswith("v_fmac") or op.startswith("v_pk_fmac"):
        return Ins(t, "valu", rg(0), allr)
    if op.startswith("v_cndmask"):
        u = [r for i in range(1, len(ops)) for r in rg(i)]
        if len(ops) == 3: u.append(("vcc", 0))
        return Ins(t, "valu", rg(0), u)
    if op.startswith("v_"):
        return Ins(t, "valu", rg(0), [r for i in range(1, len(ops)) for r in rg(i)])
    if op == "s_nop":
        i = Ins(t, "nop"); i.extra = int(ops[0]) if ops else int(rest); return i
    if op in ("s_barrier", "s_endpgm", "s_sleep", "s_setprio", "s_waitcnt"):
        return Ins(t, "misc")
    if op.startswith("s_cbranch") or op == "s_branch":
        return Ins(t, "branch")
    if op.startswith("s_cmp") or op.startswith("s_bitcmp"):
        return Ins(t, "salu", [("scc", 0)], allr)
    if op.startswith("s_"):
        d = rg(0); u = [r for i in range(1, len(ops)) for r in rg(i)]
        if op.startswith(("s_add", "s_sub", "s_and", "s_or", "s_xor", "s_lshl", "s_lshr", "s_bfe", "s_min", "s_max", "s_ashr", "s_not")): d = d + [("scc", 0)]
        if op.startswith(("s_cselect", "s_addc")): u = u + [("scc", 0)]
        return Ins(t, "salu", d, u)
    if op.endswith(":") or op.startswith("."):
        return Ins(t, "label")
    raise ValueError("unknown instr: " + t)

VM_KINDS = ("dma", "vload", "vstore")
LG_KINDS = ("ldsr", "ldsw")

class Wait(Ins):
    def __init__(self, vm=None, lg=None):
        super().__init__("s_waitcnt", "wait")
        self.targets = (vm, lg)

class Prog:
    def __init__(self):
        self.ins = []
    def e(self, x):
        if isinstance(x, (list, tuple)):
            for y in x: self.e(y)
            return None
        if isinstance(x, str):
            x = parse(x)
        self.ins.append(x)
        return x
    def raw(self, text):
        i = Ins(text, "raw"); self.ins.append(i); return i

    def finalize(self, check=True):
        vm_seq = []; lg_seq = []; smem_out = 0
        idx_vm = {}; idx_lg = {}
        lines = []
        pend = {}
        vm_done = 0; lg_done = 0
        hist = []
        errs = []
        lastw = {}
        def flat(t):
            if t is None: return None
            if isinstance(t, int): return t
            if isinstance(t, Ins): return [t]
            return list(t)
        for n, i in enumerate(self.ins):
            if i.kind == "wait":
                vm, lg = flat(i.targets[0]), flat(i.targets[1])
                parts = []
                if vm is not None:
                    if isinstance(vm, int): need = len(vm_seq) - vm
                    else:
                        need = max([idx_vm[id(x)] + 1 for x in vm] + [0])
                    cnt = min(len(vm_seq) - need, 63)
                    parts.append(f"vmcnt({cnt})")
                    vm_done = max(vm_done, len(vm_seq) - cnt)
                if lg is not None:
                    if isinstance(lg, int): need = len(lg_seq) - lg
                    else:
                        need = max([idx_lg[id(x)] + 1 for x in lg] + [0])
                    cnt = min(len(lg_seq) - need, 15)
                    parts.append(f"lgkmcnt({cnt})")
                    lg_done = max(lg_done, len(lg_seq) - cnt)
                    if cnt == 0:
                        smem_out = 0
                        for r in [r for r, p in pend.items() if p[0] == "smem"]: del pend[r]
                i.text = "s_waitcnt " + " ".join(parts)
                for r in [r for r, p in pend.items() if (p[0] == "vm" and p[1] < vm_done) or (p[0] == "lg" and p[1] < lg_done)]:
                    del pend[r]
            if check and i.kind not in ("raw", "label"):
                for r in (i.uses | i.defs):
                    if r in pend:
                        errs.append(f"pending-load reg {r} touched by [{n}] {i.text}")
                dist = 0
                for p in reversed(hist):
                    def need(k, why):
                        if dist < k: errs.append(f"hazard {why}: need {k} have {dist}: [{p.text}] -> [{n}] [{i.text}]")
                    pv = p.kind == "valu"
                    if pv and i.kind == "mfma" and (p.defs & i.uses): need(2, "valu->mfma")
                    if p.kind == "mfma":
                        big = "32x32" in p.text
                        if i.kind == "mfma":
                            ab = i.uses - i.srcc
                            ops = [o.strip() for o in i.text[len(i.op()):].split(",")]
                            ab = set(regs_of(ops[1]) + regs_of(ops[2]))
                            if p.defs & ab: need(12 if big else 8, "mfmaD->AB")
                            if p.defs & i.srcc and p.defs != i.srcc: need(10 if big else 6, "mfmaD->C partial")
                            if (p.defs & i.defs) and not (p.defs & i.srcc): need(10 if big else 6, "mfmaD WAW mfma")
                        elif i.kind in ("valu", "ldsr", "ldsw", "vload", "vstore", "dma"):
                            if p.defs & (i.uses | i.defs): need(12 if big else 8, "mfmaD->valu/mem")
                            if i.kind == "valu" and (p.srcc & i.defs): need(7 if big else 3, "mfmaC WAR")
                    if pv and p.op().startswith(TRANS) and i.kind == "valu" and not i.op().startswith(TRANS) and (p.defs & i.uses): need(1, "trans")
                    if pv and i.op().startswith("v_permlane") and (p.defs & i.uses): need(2, "permlane")
                    if pv and i.op().startswith(("v_readfirstlane", "v_readlane")) and (p.defs & i.uses): need(1, "readlane")
                    sdefs = {r for r in p.defs if r[0] in ("s", "vcc")}
                    if pv and sdefs:
                        if i.kind in VM_KINDS and (sdefs & i.uses): need(5, "valu sgpr->vmem")
                        if i.kind == "valu" and (sdefs & i.uses): need(2, "valu sgpr->valu")
                    if p.kind == "salu" and ("m0", 0) in p.defs and i.kind == "dma": need(1, "m0->dma")
                    if p.kind == "vstore" and p.extra and (p.extra & i.defs): need(2, "store data WAR")
                    dist += (p.extra + 1) if p.kind == "nop" else (0 if p.kind in ("label", "raw") else 1)
                    if dist > 20: break
            if i.expect:
                for w_ in i.expect:
                    for r in w_.defs:
                        if r in i.uses and lastw.get(r) is not w_:
                            errs.append(f"operand {r} of [{n}] {i.text} last written by {lastw.get(r).text if lastw.get(r) else None}, expected {w_.text}")
            if i.kind == "salu" and ("scc", 0) in i.uses:
                lw = lastw.get(("scc", 0))
                want = "s_cmp" if i.op().startswith("s_cselect") else "s_add_u32"
                if lw is None or not lw.op().startswith(want): errs.append(f"scc consumer [{n}] {i.text} sees {lw.text if lw else None}")
            if i.kind == "raw": lastw.pop(("scc", 0), None)
            for r in i.defs: lastw[r] = i
            if i.kind in VM_KINDS:
                idx_vm[id(i)] = len(vm_seq); vm_seq.append(i)
                if i.kind == "vload":
                    for r in i.defs: pend[r] = ("vm", len(vm_seq) - 1)
                if len(vm_seq) - vm_done > 63: errs.append(f"more than 63 vm outstanding at [{n}] {i.text}")
            if i.kind in LG_KINDS:
                idx_lg[id(i)] = len(lg_seq); lg_seq.append(i)
                if i.kind == "ldsr":
                    for r in i.defs: pend[r] = ("lg", len(lg_seq) - 1)
            if i.kind == "smem":
                for r in i.defs: pend[r] = ("smem", 0)
            hist.append(i)
            lines.append(("" if i.kind in ("label", "raw") else "    ") + i.text)
        if errs:
            for x in errs[:40]: print("ERR", x)
            raise SystemExit(f"{len(errs)} generator check errors")
        return lines

def weave(mf, gaps_fill, per_gap=2):
    n = len(mf)
    slots = {g: [] for g in range(-1, n)}
    cur = -1
    for g, ins in gaps_fill:
        g = max(g, cur)
        group = ins if isinstance(ins, list) else [ins]
        while g < n - 1 and g >= 0 and len(slots[g]) + len(group) > per_gap and len(slots[g]) > 0: g += 1
        g = min(g, n - 1)
        slots[g] += group
        cur = g
    out = list(slots[-1])
    for k in range(n):
        out.append(mf[k]); out += slots[k]
    return out

def link(pre, users):
    last = {}
    for p in pre:
        for r in p.defs: last[r] = p
    for u in users:
        u.expect = [w for r, w in last.items() if r in u.uses]
    return users
```

```python
import sys, argparse
from asmlib import *

NAME = "concat_heads__gqa_block_cached__mha_block_cached__near_ridge"

class Cfg:
    stamps = False
    nt_x = "nt"; nt_wq = "nt"; nt_k = "nt"; nt_wo = "nt"; nt_v = "nt"
    kpos = [6, 7, 8, 9]
    rot1 = "par"
    rot2 = "c"
    codepf = True

WQ = 0; XR = 65536; KR = 98304; SXCH = 81920; PR = 65536
WS_PFLAG = 4096; WS_RFLAG = 16384; WS_P = 1 << 20; WS_R = 4 << 20; WS_ST = 192 << 20
WS_SIZE = 268435456
OOB = 0x80000000
SRD_X = 36; SRD_Q = 40; SRD_K = 44; SRD_O = 48; SRD_V = 52; SRD_W = 56; SRD_OUT = 60; SRD_D = 64
sW = 68; sBG = 69; sC = 70; sHQ = 71; sBR1 = 72; sT0 = 73; sT1 = 74; sT2 = 75; sT3 = 76
sKK = 77
sQOFF = 78; sXOFF = 79; sKBS = 80
sMQ = 81
sMX = 82
sMW4 = 83
sVS = 84
sVB = 88
sWP = 92
sNONCE = 93; sLEAD = 94; sSC = 95
sPOFF = 96
sPFL = 97
sRDST = 98
sME = 101
sXJ = 34
sMV = 35
STAMP0 = 8
vLANE = 1
vXo = 2; vQo = 6; vKo = 10; vWo = 14
vT = 18; vT2 = 26
vRxS = 34; vRxO = 36; vRv = 38; vL = 40; vLR = 41; vTMP = 42
vA = 48
vB = 88
vKr = 120
ACC = 128

def gen(cfg):
    P = Prog()
    e = P.e
    nstamp = [0]
    def stamp():
        if not cfg.stamps: return []
        k = nstamp[0]; nstamp[0] += 1
        assert k < 13
        return [parse(f"s_memrealtime {s(STAMP0 + 2 * k, 2)}")]

    e("s_cmp_ge_u32 s2, 0x100")
    e("s_cbranch_scc1 L_end")
    e("s_load_dwordx16 s[8:23], s[0:1], 0")
    e("s_load_dwordx8 s[24:31], s[0:1], 64")
    e("s_load_dwordx2 s[32:33], s[0:1], 96")
    e(f"v_and_b32 {v(vLANE)}, 63, v0")
    e(f"v_lshrrev_b32 {v(vTMP)}, 6, v0")
    e(f"s_and_b32 {s(sHQ)}, s2, 3")
    e(f"v_readfirstlane_b32 {s(sW)}, {v(vTMP)}")
    e(f"s_bfe_u32 {s(sBR1)}, s2, 0x10002")
    e(f"s_bfe_u32 {s(sC)}, s2, 0x20003")
    e(f"s_lshr_b32 {s(sBG)}, s2, 5")
    t0, t1, t2, t3, t4, t5 = [vTMP + i for i in range(6)]
    e(f"v_lshrrev_b32 {v(t0)}, 4, {v(vLANE)}")
    e(f"v_and_b32 {v(t1)}, 15, {v(vLANE)}")
    e(f"v_lshlrev_b32 {v(t2)}, 1, {v(t0)}")
    e(f"v_xor_b32 {v(t2)}, {v(t1)}, {v(t2)}")
    e(f"v_xor_b32 {v(t3)}, 8, {v(t2)}")
    e(f"v_lshlrev_b32 {v(t2)}, 4, {v(t2)}")
    e(f"v_lshlrev_b32 {v(t3)}, 4, {v(t3)}")
    e(f"v_lshl_add_u32 {v(vQo)}, {v(t0)}, 13, {v(t2)}")
    e(f"v_lshl_add_u32 {v(vQo + 2)}, {v(t0)}, 13, {v(t3)}")
    e(f"v_add_u32 {v(vQo + 1)}, {4 * 8192 - 1024}, {v(vQo)}")
    e(f"v_add_u32 {v(vQo + 3)}, {12 * 8192 - 3072}, {v(vQo + 2)}")
    e(f"v_add_u32 {v(vQo + 2)}, {8 * 8192 - 2048}, {v(vQo + 2)}")
    e(f"v_mul_u32_u24 {v(t4)}, 896, {v(t0)}")
    e(f"v_add_u32 {v(vWo)}, {v(t4)}, {v(t2)}")
    e(f"v_add_u32 {v(vWo + 2)}, {v(t4)}, {v(t3)}")
    e(f"v_add_u32 {v(vWo + 1)}, {4 * 896 - 1024}, {v(vWo)}")
    e(f"v_add_u32 {v(vWo + 3)}, {12 * 896 - 3072}, {v(vWo + 2)}")
    e(f"v_add_u32 {v(vWo + 2)}, {8 * 896 - 2048}, {v(vWo + 2)}")
    e(f"s_cmp_eq_u32 {s(sC)}, 3")
    e(f"s_cselect_b32 {s(sT0)}, 128, -1")
    e(f"v_mov_b32 {v(t5)}, {OOB:#x}")
    e(f"v_cmp_le_u32 vcc, {s(sT0)}, {v(t2)}")
    e("s_nop 1")
    e(f"v_cndmask_b32 {v(vWo)}, {v(vWo)}, {v(t5)}, vcc")
    e(f"v_cndmask_b32 {v(vWo + 1)}, {v(vWo + 1)}, {v(t5)}, vcc")
    e(f"v_cmp_le_u32 vcc, {s(sT0)}, {v(t3)}")
    e("s_nop 1")
    e(f"v_cndmask_b32 {v(vWo + 2)}, {v(vWo + 2)}, {v(t5)}, vcc")
    e(f"v_cndmask_b32 {v(vWo + 3)}, {v(vWo + 3)}, {v(t5)}, vcc")
    e(f"v_lshrrev_b32 {v(t0)}, 3, {v(vLANE)}")
    e(f"v_and_b32 {v(t1)}, 7, {v(vLANE)}")
    e(f"v_lshrrev_b32 {v(t2)}, 1, {v(t0)}")
    e(f"v_xor_b32 {v(t2)}, {v(t1)}, {v(t2)}")
    e(f"v_xor_b32 {v(t3)}, 4, {v(t2)}")
    e(f"v_lshlrev_b32 {v(t2)}, 4, {v(t2)}")
    e(f"v_lshlrev_b32 {v(t3)}, 4, {v(t3)}")
    e(f"v_mul_u32_u24 {v(t4)}, 896, {v(t0)}")
    e(f"v_add_u32 {v(vXo)}, {v(t4)}, {v(t2)}")
    e(f"v_add_u32 {v(vXo + 1)}, {v(t4)}, {v(t3)}")
    e(f"v_add_u32 {v(vXo + 2)}, {16 * 896 - 2048}, {v(vXo)}")
    e(f"v_add_u32 {v(vXo + 3)}, {24 * 896 - 3072}, {v(vXo + 1)}")
    e(f"v_add_u32 {v(vXo + 1)}, {8 * 896 - 1024}, {v(vXo + 1)}")
    e(f"v_lshl_add_u32 {v(vKo)}, {v(t0)}, 9, {v(t2)}")
    e(f"v_lshl_add_u32 {v(vKo + 1)}, {v(t0)}, 9, {v(t3)}")
    e(f"v_add_u32 {v(vKo + 2)}, {16 * 512 - 2048}, {v(vKo)}")
    e(f"v_add_u32 {v(vKo + 3)}, {24 * 512 - 3072}, {v(vKo + 1)}")
    e(f"v_add_u32 {v(vKo + 1)}, {8 * 512 - 1024}, {v(vKo + 1)}")
    e(f"s_lshl_b32 {s(sMW4)}, {s(sW)}, 12")
    e(f"s_and_b32 {s(sT0)}, {s(sW)}, 1")
    e(f"s_lshr_b32 {s(sT1)}, {s(sW)}, 1")
    e(f"s_lshl_b32 {s(sT2)}, {s(sT0)}, 13")
    e(f"s_lshl_b32 {s(sT3)}, {s(sT1)}, 12")
    e(f"s_add_u32 {s(sMQ)}, {s(sT2)}, {s(sT3)}")
    e(f"s_add_u32 {s(sMX)}, {s(sMW4)}, {XR}")
    e(f"s_lshl_b32 {s(sMV)}, {s(sW)}, 14")
    e(f"s_add_u32 {s(sMV)}, {s(sMV)}, {KR}")
    if cfg.rot1 == "none":
        e(f"s_mov_b32 {s(sKK)}, 0")
    elif cfg.rot1 == "par":
        e(f"s_add_u32 {s(sKK)}, {s(sBG)}, {s(sC)}")
        e(f"s_and_b32 {s(sKK)}, {s(sKK)}, 1")
        e(f"s_lshl_b32 {s(sKK)}, {s(sKK)}, 3")
    elif cfg.rot1 == "tri":
        e(f"s_add_u32 {s(sKK)}, {s(sBG)}, {s(sC)}")
        e(f"s_and_b32 {s(sKK)}, {s(sKK)}, 3")
        e(f"s_lshl_b32 {s(sKK)}, {s(sKK)}, 2")
        e(f"s_lshr_b32 {s(sKK)}, 0x0a40, {s(sKK)}")
        e(f"s_and_b32 {s(sKK)}, {s(sKK)}, 15")
    elif cfg.rot1 == "quad":
        e(f"s_add_u32 {s(sKK)}, {s(sBG)}, {s(sC)}")
        e(f"s_and_b32 {s(sKK)}, {s(sKK)}, 3")
        e(f"s_lshl_b32 {s(sKK)}, {s(sKK)}, 2")
        e(f"s_lshr_b32 {s(sKK)}, 0xa840, {s(sKK)}")
        e(f"s_and_b32 {s(sKK)}, {s(sKK)}, 15")
    elif cfg.rot1 == "full":
        e(f"s_lshl_b32 {s(sKK)}, {s(sC)}, 1")
        e(f"s_add_u32 {s(sKK)}, {s(sKK)}, {s(sBG)}")
        e(f"s_cmp_ge_u32 {s(sKK)}, 7")
        e(f"s_cselect_b32 {s(sT2)}, 7, 0")
        e(f"s_sub_u32 {s(sKK)}, {s(sKK)}, {s(sT2)}")
        e(f"s_lshl_b32 {s(sKK)}, {s(sKK)}, 1")
    e(f"s_lshr_b32 {s(sXJ)}, {s(sKK)}, 1")
    e(f"s_lshl_b32 {s(sQOFF)}, {s(sKK)}, 18")
    e(f"s_lshl_b32 {s(sXOFF)}, {s(sXJ)}, 7")
    e(Wait(lg=0))
    e(f"s_cmp_eq_u32 {s(sBR1)}, 0")
    e(f"s_cselect_b64 {s(SRD_X, 2)}, s[8:9], s[18:19]")
    e(f"s_cselect_b64 {s(SRD_Q, 2)}, s[14:15], s[24:25]")
    e(f"s_cselect_b64 {s(SRD_K, 2)}, s[10:11], s[20:21]")
    e(f"s_cselect_b64 {s(SRD_V, 2)}, s[22:23], s[12:13]")
    e(f"s_cselect_b64 {s(SRD_O, 2)}, s[26:27], s[16:17]")
    e(f"s_cselect_b32 {s(sKBS)}, 17, 18")
    def srd_add(srd, off_s, total):
        e(f"s_add_u32 {s(srd)}, {s(srd)}, {s(off_s)}")
        e(f"s_addc_u32 {s(srd + 1)}, {s(srd + 1)}, 0")
        e(f"s_sub_u32 {s(srd + 2)}, {total}, {s(off_s)}" if isinstance(total, (int, str)) else "")
        e(f"s_mov_b32 {s(srd + 3)}, 0x20000")
    e(f"s_lshl_b32 {s(sT2)}, {s(sBG)}, 2")
    e(f"s_add_u32 {s(sT2)}, {s(sT2)}, {s(sW)}")
    e(f"s_mul_i32 {s(sT2)}, {s(sT2)}, {32 * 896}")
    srd_add(SRD_X, sT2, 32 * 32 * 896)
    e(f"s_lshl_b32 {s(sT2)}, {s(sHQ)}, 2")
    e(f"s_add_u32 {s(sT2)}, {s(sT2)}, {s(sC)}")
    e(f"s_lshl_b32 {s(sT3)}, {s(sT2)}, 1")
    e(f"s_add_u32 {s(sT3)}, {s(sT3)}, {s(sT0)}")
    e(f"s_lshl_b32 {s(sT3)}, {s(sT3)}, 8")
    e(f"s_lshl_b32 {s(sT1)}, {s(sT1)}, 17")
    e(f"s_add_u32 {s(sT3)}, {s(sT3)}, {s(sT1)}")
    srd_add(SRD_Q, sT3, 448 * 8192)

    def issue_wq(st):
        slot = st % 4
        out = [[parse(f"s_add_u32 m0, {s(sMQ)}, {WQ + slot * 16384}")]]
        lds = [parse(f"buffer_load_dwordx4 {v(vQo + i)}, {s(SRD_Q, 4)}, {s(sQOFF)} offen offset:{i * 1024} {cfg.nt_wq} lds") for i in range(4)]
        upd = [parse(f"s_add_u32 {s(sQOFF)}, {s(sQOFF)}, {1 << 18}"),
               parse(f"s_cmp_eq_u32 {s(sQOFF)}, {14 << 18}"),
               parse(f"s_cselect_b32 {s(sQOFF)}, 0, {s(sQOFF)}")]
        return out[0], link(out[0], lds), upd
    def issue_x(j):
        m = [parse(f"s_add_u32 m0, {s(sMX)}, {(j % 2) * 16384}")]
        lds = [parse(f"buffer_load_dwordx4 {v(vXo + i)}, {s(SRD_X, 4)}, {s(sXOFF)} offen offset:{i * 1024} {cfg.nt_x} lds") for i in range(4)]
        upd = [parse(f"s_add_u32 {s(sXOFF)}, {s(sXOFF)}, 128"),
               parse(f"s_cmp_eq_u32 {s(sXOFF)}, {7 * 128}"),
               parse(f"s_cselect_b32 {s(sXOFF)}, 0, {s(sXOFF)}")]
        return m, link(m, lds), upd
    def seq(m, lds, upd):
        return m + [parse("s_nop 0")] + lds + upd
    WQL = {}; XL = {}
    def emit_now(m, lds, upd): e(seq(m, lds, upd))
    m, l, u = issue_x(0); XL[0] = l; emit_now(m, l, u)
    m, l, u = issue_wq(0); WQL[0] = l; emit_now(m, l, u)
    m, l, u = issue_wq(1); WQL[1] = l; emit_now(m, l, u)
    if cfg.codepf:
        e("s_getpc_b64 s[2:3]")
        P.raw("L_pc:")
        e(f"s_lshl_b32 {s(sT1)}, {s(sBG)}, 2")
        e(f"s_add_u32 {s(sT1)}, {s(sT1)}, {s(sC)}")
        e(f"s_lshl_b32 {s(sT1)}, {s(sT1)}, 7")
        e(f"v_lshl_add_u32 {v(t0)}, {v(vLANE)}, 12, {s(sT1)}")
        P.raw(f"    v_min_u32 {v(t0)}, L_end-L_pc-4, {v(t0)}")
        e(f"s_cmp_lg_u32 {s(sW)}, 3")
        P.raw("    s_cbranch_scc1 L_nopf")
        P.raw("    s_mov_b64 exec, 0xff")
        P.raw(f"    global_load_dword {v(t5)}, {v(t0)}, s[2:3]")
        P.raw("    s_mov_b64 exec, -1")
        P.raw("L_nopf:")
    m, l, u = issue_x(1); XL[1] = l; emit_now(m, l, u)
    m, l, u = issue_wq(2); WQL[2] = l; emit_now(m, l, u)
    m, l, u = issue_wq(3); WQL[3] = l; emit_now(m, l, u)
    e(f"s_xor_b32 {s(sT1)}, {s(sBR1)}, 1")
    e(f"s_lshr_b32 {s(sT2)}, {s(sT2)}, {s(sT1)}")
    e(f"s_lshl_b32 {s(sT2)}, {s(sT2)}, 14")
    e(f"s_lshl_b32 {s(sT3)}, {s(sBG)}, 2")
    e(f"s_lshl_b32 {s(sT3)}, {s(sT3)}, {s(sKBS)}")
    e(f"s_add_u32 {s(sT2)}, {s(sT2)}, {s(sT3)}")
    e(f"s_lshl_b32 {s(sT3)}, {s(sW)}, 7")
    e(f"s_add_u32 {s(sT2)}, {s(sT2)}, {s(sT3)}")
    e(f"s_lshl_b32 {s(sT3)}, 32, {s(sKBS)}")
    srd_add(SRD_K, sT2, s(sT3))
    e(f"s_lshl_b32 {s(sKBS)}, 1, {s(sKBS)}")
    e(f"s_lshl_b32 {s(sT2)}, {s(sHQ)}, 2")
    e(f"s_add_u32 {s(sT2)}, {s(sT2)}, {s(sW)}")
    e(f"s_mul_i32 {s(sT0)}, {s(sT2)}, {256 * 896}")
    e(f"s_lshl_b32 {s(sT1)}, {s(sC)}, 8")
    e(f"s_add_u32 {s(sT0)}, {s(sT0)}, {s(sT1)}")
    srd_add(SRD_O, sT0, 4096 * 896)
    e(f"s_lshr_b32 {s(sT2)}, {s(sT2)}, {s(sBR1)}")
    e(f"s_lshl_b32 {s(sT2)}, {s(sT2)}, 14")
    e(f"s_sub_u32 {s(sT1)}, 18, {s(sBR1)}")
    e(f"s_lshl_b32 {s(sT3)}, {s(sBG)}, 2")
    e(f"s_lshl_b32 {s(sT3)}, {s(sT3)}, {s(sT1)}")
    e(f"s_add_u32 {s(sT2)}, {s(sT2)}, {s(sT3)}")
    e(f"s_lshl_b32 {s(sT3)}, 32, {s(sT1)}")
    srd_add(SRD_V, sT2, s(sT3))
    for sl in range(4):
        e(f"s_add_u32 {s(sT0)}, {s(sHQ)}, {sl + 1}")
        e(f"s_and_b32 {s(sT0)}, {s(sT0)}, 3")
        e(f"s_lshl_b32 {s(sVB + sl)}, {s(sT0)}, {s(sT1)}")
        d = sRDST + sl
        e(f"s_xor_b32 {s(sT2)}, {s(sBR1)}, 1")
        e(f"s_lshl_b32 {s(sT2)}, {s(sT2)}, 3")
        e(f"s_add_u32 {s(sT2)}, {s(sT2)}, {s(sBG)}")
        e(f"s_lshl_b32 {s(sT2)}, {s(sT2)}, 2")
        e(f"s_add_u32 {s(sT2)}, {s(sT2)}, {s(sT0)}")
        e(f"s_lshl_b32 {s(sT2)}, {s(sT2)}, 2")
        e(f"s_add_u32 {s(d)}, {s(sT2)}, {s(sC)}")
    if cfg.rot2 == "none": e(f"s_mov_b32 {s(sWP)}, 0")
    elif cfg.rot2 == "c": e(f"s_mov_b32 {s(sWP)}, {s(sC)}")
    elif cfg.rot2 == "cbg":
        e(f"s_add_u32 {s(sWP)}, {s(sC)}, {s(sBG)}")
        e(f"s_and_b32 {s(sWP)}, {s(sWP)}, 3")
    elif cfg.rot2 == "par":
        e(f"s_add_u32 {s(sWP)}, {s(sC)}, {s(sBG)}")
        e(f"s_and_b32 {s(sWP)}, {s(sWP)}, 1")
        e(f"s_lshl_b32 {s(sWP)}, {s(sWP)}, 1")
    for sg in range(4):
        e(f"s_add_u32 {s(sT0)}, {s(sWP)}, {sg}")
        e(f"s_and_b32 {s(sT0)}, {s(sT0)}, 3")
        e(f"s_lshl_b32 {s(sVS + sg)}, {s(sT0)}, 7")
    e(f"s_mul_i32 {s(sWP)}, {s(sWP)}, {64 * 896}")
    e(f"s_mov_b64 {s(SRD_W, 2)}, s[32:33]")
    e(f"s_mov_b32 {s(SRD_W + 2)}, {WS_SIZE}")
    e(f"s_mov_b32 {s(SRD_W + 3)}, 0x20000")
    e(f"s_mov_b64 {s(SRD_D, 2)}, s[30:31]")
    e(f"s_mov_b32 {s(SRD_D + 2)}, 256")
    e(f"s_mov_b32 {s(SRD_D + 3)}, 0x20000")
    e(f"s_mov_b64 {s(SRD_OUT, 2)}, s[28:29]")
    e(f"s_lshl_b32 {s(sT0)}, {s(sBG)}, 2")
    e(f"s_add_u32 {s(sT0)}, {s(sT0)}, {s(sHQ)}")
    e(f"s_mul_i32 {s(sT0)}, {s(sT0)}, {32 * 1792}")
    e(f"s_xor_b32 {s(sT1)}, {s(sBR1)}, 1")
    e(f"s_mul_i32 {s(sT1)}, {s(sT1)}, 896")
    e(f"s_add_u32 {s(sT0)}, {s(sT0)}, {s(sT1)}")
    e(f"s_lshl_b32 {s(sT1)}, {s(sC)}, 8")
    e(f"s_add_u32 {s(sT0)}, {s(sT0)}, {s(sT1)}")
    e(f"s_lshl_b32 {s(sT1)}, {s(sW)}, 6")
    e(f"s_add_u32 {s(sT0)}, {s(sT0)}, {s(sT1)}")
    srd_add(SRD_OUT, sT0, 32 * 32 * 1792)
    e(f"s_lshl_b32 {s(sT0)}, {s(sBR1)}, 3")
    e(f"s_add_u32 {s(sT0)}, {s(sT0)}, {s(sBG)}")
    e(f"s_lshl_b32 {s(sT0)}, {s(sT0)}, 2")
    e(f"s_add_u32 {s(sT0)}, {s(sT0)}, {s(sHQ)}")
    e(f"s_lshl_b32 {s(sPOFF)}, {s(sT0)}, 15")
    e(f"s_lshl_b32 {s(sT1)}, {s(sW)}, 13")
    e(f"s_add_u32 {s(sPOFF)}, {s(sPOFF)}, {s(sT1)}")
    e(f"s_lshl_b32 {s(sT1)}, {s(sC)}, 11")
    e(f"s_add_u32 {s(sPOFF)}, {s(sPOFF)}, {s(sT1)}")
    e(f"s_add_u32 {s(sPOFF)}, {s(sPOFF)}, {WS_P}")
    e(f"s_lshl_b32 {s(sPFL)}, {s(sT0)}, 7")
    e(f"s_lshl_b32 {s(sT1)}, {s(sC)}, 2")
    e(f"s_add_u32 {s(sT1)}, {s(sT1)}, {s(sW)}")
    e(f"s_lshl_b32 {s(sT1)}, {s(sT1)}, 2")
    e(f"s_add_u32 {s(sPFL)}, {s(sPFL)}, {s(sT1)}")
    e(f"s_add_u32 {s(sPFL)}, {s(sPFL)}, {WS_PFLAG}")
    e(f"s_mov_b32 {s(sSC)}, 0x3db8aa3b")
    e(f"s_or_b32 {s(sLEAD)}, {s(sHQ)}, {s(sBR1)}")
    e(f"s_or_b32 {s(sLEAD)}, {s(sLEAD)}, {s(sC)}")
    e(f"s_or_b32 {s(sLEAD)}, {s(sLEAD)}, {s(sW)}")
    vEP = vKr
    e(f"s_lshl_b32 {s(sT0)}, {s(sBG)}, 7")
    e(f"s_cmp_lg_u32 {s(sLEAD)}, 0")
    P.raw("    s_cbranch_scc1 L_nolead0")
    P.raw(f"    buffer_load_dword {v(vEP)}, off, {s(SRD_W, 4)}, {s(sT0)} sc1")
    P.raw("L_nolead0:")
    e(f"v_lshrrev_b32 {v(t0)}, 4, {v(vLANE)}")
    e(f"v_bfe_u32 {v(t1)}, {v(vLANE)}, 2, 2")
    e(f"v_and_b32 {v(t2)}, 3, {v(vLANE)}")
    e(f"v_and_b32 {v(t3)}, 1, {v(t0)}")
    e(f"v_lshl_add_u32 {v(t4)}, {v(t3)}, 2, {v(t1)}")
    e(f"v_lshlrev_b32 {v(t4)}, 5, {v(t4)}")
    e(f"v_lshl_add_u32 {v(t4)}, {v(t2)}, 3, {v(t4)}")
    e(f"v_lshl_add_u32 {v(t3)}, {v(t3)}, 3, {v(t1)}")
    e(f"v_lshl_add_u32 {v(t4)}, {v(t3)}, 8, {v(t4)}")
    e(f"v_lshrrev_b32 {v(t3)}, 1, {v(t0)}")
    e(f"s_and_b32 {s(sT0)}, {s(sW)}, 1")
    e(f"s_lshl_b32 {s(sT0)}, {s(sT0)}, 13")
    e(f"v_lshl_add_u32 {v(vT)}, {v(t3)}, 12, {v(t4)}")
    e(f"v_add_u32 {v(vT)}, {s(sT0)}, {v(vT)}")
    e(f"v_lshl_add_u32 {v(vT2)}, {v(t3)}, 14, {v(t4)}")
    e(f"v_add_u32 {v(vT2)}, {s(sMW4)}, {v(vT2)}")
    for t in range(1, 8):
        e(f"v_xor_b32 {v(vT + t)}, {t * 32}, {v(vT)}")
        e(f"v_xor_b32 {v(vT2 + t)}, {t * 32}, {v(vT2)}")
    e(f"v_and_b32 {v(t1)}, 15, {v(vLANE)}")
    e(f"v_lshrrev_b32 {v(t2)}, 1, {v(t1)}")
    e(f"v_xor_b32 {v(t3)}, {v(t0)}, {v(t2)}")
    e(f"v_lshlrev_b32 {v(t3)}, 4, {v(t3)}")
    e(f"v_lshl_add_u32 {v(t3)}, {v(t1)}, 7, {v(t3)}")
    e(f"s_lshl_b32 {s(sT1)}, {s(sW)}, 12")
    e(f"s_add_u32 {s(sT1)}, {s(sT1)}, {XR}")
    e(f"s_xor_b32 {s(sT2)}, {s(sT1)}, 4096")
    e(f"v_add_u32 {v(vRxO)}, {s(sT1)}, {v(t3)}")
    e(f"v_add_u32 {v(vRxS)}, {s(sT2)}, {v(t3)}")
    e(f"v_add_u32 {v(vRv)}, {s(sMV)}, {v(t3)}")
    e(f"v_xor_b32 {v(vRxO + 1)}, 64, {v(vRxO)}")
    e(f"v_xor_b32 {v(vRxS + 1)}, 64, {v(vRxS)}")
    e(f"v_xor_b32 {v(vRv + 1)}, 64, {v(vRv)}")
    e(f"v_lshlrev_b32 {v(vL)}, 4, {v(vLANE)}")
    e(f"s_lshr_b32 {s(sT1)}, {s(sW)}, 1")
    e(f"s_add_u32 {s(sT1)}, {s(sT1)}, {s(sC)}")
    e(f"s_cmp_eq_u32 {s(sT1)}, 4")
    e(f"s_cselect_b32 {s(sT3)}, {OOB:#x}, 0")
    e(f"v_add_u32 {v(vLR)}, {s(sT3)}, {v(vL)}")
    e(stamp())

    def Aslot(st, t): return vA + ((8 * st + t) % 10) * 4
    def Bset(st, n): return vB + (st % 2) * 16 + n * 4
    def acc(t, n): return ACC + (t * 4 + n) * 4
    def readA(st, t):
        base = WQ + (st % 4) * 16384
        r = Aslot(st, t)
        return [parse(f"ds_read_b64_tr_b16 {v(r, 2)}, {v(vT + t)} offset:{base}"),
                parse(f"ds_read_b64_tr_b16 {v(r + 2, 2)}, {v(vT + t)} offset:{base + 1024}")]
    def readB(st, n):
        ad = (vRxS if n < 2 else vRxO) + (st & 1)
        return parse(f"ds_read_b128 {v(Bset(st, n), 4)}, {v(ad)} offset:{((st >> 1) % 2) * 16384 + (n & 1) * 2048}")
    def issue_k(b):
        m = [parse(f"s_add_u32 m0, {s(sMW4)}, {KR + b * 16384}")]
        pre = [parse(f"s_mul_i32 {s(sT0)}, {s(sKBS)}, {b}")]
        lds = [parse(f"buffer_load_dwordx4 {v(vKo + i)}, {s(SRD_K, 4)}, {s(sT0)} offen offset:{i * 1024} {cfg.nt_k} lds") for i in range(4)]
        return m + pre, link(m + pre, lds), []
    def wo_buf(p): return 32768 if p % 2 == 0 else 0
    def issue_wo_half(p, hf):
        m = [parse(f"s_add_u32 m0, {s(sMW4)}, {wo_buf(p) + hf * 16384}")]
        lds = [parse(f"buffer_load_dwordx4 {v(vWo + i)}, {s(SRD_O, 4)}, {s(sWP)} offen offset:{i * 1024} {cfg.nt_wo} lds") for i in range(4)]
        upd = [parse(f"s_add_u32 {s(sWP)}, {s(sWP)}, {16 * 896}")]
        if hf == 1 and p % 2 == 1:
            upd += [parse(f"s_cmp_eq_u32 {s(sWP)}, {256 * 896}"), parse(f"s_cselect_b32 {s(sWP)}, 0, {s(sWP)}")]
        return m, link(m, lds), upd
    def tr_wo(p):
        out = []
        for t in range(8):
            r = (p * 8 + t) * 4
            out.append(parse(f"ds_read_b64_tr_b16 {a(r, 2)}, {v(vT2 + t)} offset:{wo_buf(p)}"))
            out.append(parse(f"ds_read_b64_tr_b16 {a(r + 2, 2)}, {v(vT2 + t)} offset:{wo_buf(p) + 1024}"))
        return out
    def spread(g0, m, lds, upd):
        out = [(g0, x) for x in m]
        for i, l in enumerate(lds): out.append((g0 + 1 + i, l))
        if upd: out.append((g0 + 1 + len(lds), upd[0]))
        if len(upd) > 1: out.append((g0 + 2 + len(lds), list(upd[1:])))
        return out

    e(Wait(vm=XL[0] + WQL[0]))
    e("s_barrier")
    e(stamp())
    for n in range(4): e(readB(0, n))
    for t in range(8): e(readA(0, t))
    KL = {}; WOL = {}
    vNON = vKr + 1
    nonce_ld = None
    for st in range(14):
        need = []
        if st + 1 < 14: need += WQL[st + 1] + XL[(st + 1) >> 1]
        if st == 13: need += [x for b in range(4) for x in KL[b]]
        e(Wait(vm=need, lg=0))
        e("s_barrier")
        if st in (1, 7): e(stamp())
        if st == 3:
            P.raw(f"    s_cmp_lg_u32 {s(sLEAD)}, 0")
            P.raw("    s_cbranch_scc1 L_nolead1")
            P.raw(f"    v_add_u32 {v(vEP)}, 1, {v(vEP)}")
            P.raw(f"    v_max_u32 {v(vEP)}, 1, {v(vEP)}")
            P.raw(f"    s_lshl_b32 {s(sT0)}, {s(sBG)}, 5")
            P.raw(f"    s_lshl_b32 {s(sT1)}, {s(sBG)}, 7")
            P.raw("    s_mov_b64 exec, 1")
            P.raw(f"    buffer_store_dword {v(vEP)}, off, {s(SRD_D, 4)}, {s(sT0)} sc1")
            P.raw(f"    buffer_store_dword {v(vEP)}, off, {s(SRD_W, 4)}, {s(sT1)} sc1")
            P.raw("    s_mov_b64 exec, -1")
            P.raw("L_nolead1:")
        mf = []
        for t in range(8):
            for n in range(4):
                c_in = "0" if st == 0 else v(acc(t, n), 4)
                mf.append(parse(f"v_mfma_f32_16x16x32_bf16 {v(acc(t, n), 4)}, {v(Aslot(st, t), 4)}, {v(Bset(st, n), 4)}, {c_in}"))
        fill = []
        g = 0
        if st % 2 == 1 and (st + 3) // 2 < 7:
            j = (st + 3) // 2
            m, l, u = issue_x(j); XL[j] = l; fill += spread(g, m, l, u); g += 7
        if st + 4 < 14:
            m, l, u = issue_wq(st + 4); WQL[st + 4] = l; fill += spread(g, m, l, u); g += 7
        else:
            p, hf = (st - 10) // 2, (st - 10) % 2
            m, l, u = issue_wo_half(p, hf); WOL[(p, hf)] = l; fill += spread(g, m, l, u); g += 7
        for b in range(4):
            if cfg.kpos[b] == st:
                m, l, u = issue_k(b); KL[b] = l; fill += spread(g, m, l, u); g += 6
        if st == 7:
            fill.append((g, [parse(f"s_lshl_b32 {s(sT1)}, {s(sBG)}, 5"), parse(f"s_cmp_lg_u32 {s(sW)}, 0")]))
            r1 = Ins(f"    s_cbranch_scc1 L_non0\n    buffer_load_dword {v(vNON)}, off, {s(SRD_D, 4)}, {s(sT1)} sc1\nL_non0:", "raw")
            fill.append((g, r1))
        if st + 1 < 14:
            for t in range(8):
                g0 = 0 if t < 2 else (t - 2) * 4 + 3
                ra = readA(st + 1, t)
                fill.append((g0 + (t if t < 2 else 0), ra[0])); fill.append((g0 + (t if t < 2 else 0) + 1, ra[1]))
            for n in range(4): fill.append((5 + 2 * n, readB(st + 1, n)))
        if st == 11:
            blk = "\n".join([
                f"    s_cmp_lg_u32 {s(sW)}, 0", "    s_cbranch_scc1 L_non1",
                f"    s_lshl_b32 {s(sT1)}, {s(sBG)}, 5", f"    s_mov_b32 {s(sT2)}, 0",
                "L_non_spin:",
                f"    v_readfirstlane_b32 {s(sT0)}, {v(vNON)}", "    s_nop 3",
                f"    s_cmp_lg_u32 {s(sT0)}, 0", "    s_cbranch_scc1 L_non_ok",
                f"    s_add_u32 {s(sT2)}, {s(sT2)}, 1", f"    s_cmp_ge_u32 {s(sT2)}, 0x40000", "    s_cbranch_scc1 L_non_ok",
                "    s_sleep 4",
                f"    buffer_load_dword {v(vNON)}, off, {s(SRD_D, 4)}, {s(sT1)} sc1", "    s_waitcnt vmcnt(0)",
                "    s_branch L_non_spin",
                "L_non_ok:",
                f"    v_mov_b32 {v(vTMP)}, {SXCH}",
                f"    ds_write_b32 {v(vTMP)}, {v(vNON)}",
                "L_non1:"])
            fill.append((-1, Ins(blk, "raw")))
        if st == 12:
            nrd_a = parse(f"v_mov_b32 {v(vTMP)}, {SXCH}")
            nrd = parse(f"ds_read_b32 {v(vNON)}, {v(vTMP)}")
            fill.append((26, nrd_a)); fill.append((28, nrd))
        if st == 13:
            fill.append((0, parse(f"v_readfirstlane_b32 {s(sNONCE)}, {v(vNON)}")))
            kq = []
            kq.append(f"v_and_b32 {v(t1)}, 15, {v(vLANE)}")
            kq.append(f"v_lshrrev_b32 {v(t2)}, 1, {v(t1)}")
            kq.append(f"v_lshrrev_b32 {v(t0)}, 5, {v(vLANE)}")
            kq.append(f"v_xor_b32 {v(t2)}, {v(t0)}, {v(t2)}")
            kq.append(f"v_lshlrev_b32 {v(t2)}, 4, {v(t2)}")
            kq.append(f"v_lshl_add_u32 {v(t2)}, {v(t1)}, 7, {v(t2)}")
            kq.append(f"v_bfe_u32 {v(t0)}, {v(vLANE)}, 4, 1")
            kq.append(f"v_lshl_add_u32 {v(t2)}, {v(t0)}, 3, {v(t2)}")
            kq.append(f"s_and_b32 {s(sT0)}, {s(sW)}, 1")
            kq.append(f"s_lshl_b32 {s(sT0)}, {s(sT0)}, 13")
            kq.append(f"s_add_u32 {s(sT0)}, {s(sT0)}, {s(sMV)}")
            kq.append(f"s_lshl_b32 {s(sT1)}, {s(sW)}, 14")
            kq.append(f"s_xor_b32 {s(sT2)}, {s(sT1)}, 16384")
            kq.append(f"s_sub_u32 {s(sT2)}, {s(sT2)}, {s(sT1)}")
            kq.append(f"s_add_u32 {s(sT2)}, {s(sT2)}, {s(sT0)}")
            kq.append(f"v_add_u32 {v(vKr)}, {s(sT2)}, {v(t2)}")
            kq.append(f"v_add_u32 {v(vKr + 4)}, {s(sT0)}, {v(t2)}")
            for x in (1, 2, 3):
                kq.append(f"v_xor_b32 {v(vKr + x)}, {x * 32}, {v(vKr)}")
                kq.append(f"v_xor_b32 {v(vKr + 4 + x)}, {x * 32}, {v(vKr + 4)}")
            for i, x in enumerate(kq): fill.append((1 + i // 2, parse(x)))
            for u in range(3):
                for n in range(4):
                    A0, B0 = acc(2 * u, n), acc(2 * u + 1, n)
                    g0 = (2 * u + 1) * 4 + n + 6
                    fill.append((g0, parse(f"v_cvt_pk_bf16_f32 {v(A0)}, {v(A0)}, {v(A0 + 1)}")))
                    fill.append((g0, parse(f"v_cvt_pk_bf16_f32 {v(A0 + 1)}, {v(A0 + 2)}, {v(A0 + 3)}")))
                    fill.append((g0, parse(f"v_cvt_pk_bf16_f32 {v(A0 + 2)}, {v(B0)}, {v(B0 + 1)}")))
                    fill.append((g0, parse(f"v_cvt_pk_bf16_f32 {v(A0 + 3)}, {v(B0 + 2)}, {v(B0 + 3)}")))
        fill.sort(key=lambda x: x[0])
        e(weave(mf, fill))
    e(stamp())
    def Kf(sel, kt, u): return vA + ((sel * 2 + kt) * 4 + u) * 4
    def readK(sel, kt, u):
        r = Kf(sel, kt, u); off = (u >> 1) * 4096 + kt * 2048
        ad = vKr + sel * 4 + (u & 1) * 2
        return [parse(f"ds_read_b64 {v(r, 2)}, {v(ad)} offset:{off}"), parse(f"ds_read_b64 {v(r + 2, 2)}, {v(ad + 1)} offset:{off}")]
    KRD = {}
    cv = []
    for n in range(4):
        A0, B0 = acc(6, n), acc(7, n)
        cv += [f"v_cvt_pk_bf16_f32 {v(A0)}, {v(A0)}, {v(A0 + 1)}", f"v_cvt_pk_bf16_f32 {v(A0 + 1)}, {v(A0 + 2)}, {v(A0 + 3)}",
               f"v_cvt_pk_bf16_f32 {v(A0 + 2)}, {v(B0)}, {v(B0 + 1)}", f"v_cvt_pk_bf16_f32 {v(A0 + 3)}, {v(B0 + 2)}, {v(B0 + 3)}"]
    for u in range(4):
        for kt in range(2):
            KRD[(0, kt, u)] = readK(0, kt, u); e(KRD[(0, kt, u)])
    e(cv)
    for u in range(4):
        for kt in range(2):
            KRD[(1, kt, u)] = readK(1, kt, u); e(KRD[(1, kt, u)])
    SS = acc(1, 0); SO = acc(5, 0)
    def smfma(sel, u, kt, qt):
        d = (SS if sel == 0 else SO) + (kt * 2 + qt) * 4
        c_in = "0" if u == 0 else v(d, 4)
        return parse(f"v_mfma_f32_16x16x32_bf16 {v(d, 4)}, {v(Kf(sel, kt, u), 4)}, {v(acc(2 * u, sel * 2 + qt), 4)}, {c_in}")
    for u in range(4):
        e(Wait(lg=KRD[(0, 0, u)] + KRD[(0, 1, u)]))
        for kt in range(2):
            for qt in range(2): e(smfma(0, u, kt, qt))
    own = [smfma(1, u, kt, qt) for u in range(4) for kt in range(2) for qt in range(2)]
    e(Wait(vm=WOL[(0, 0)] + WOL[(0, 1)], lg=0))
    e(f"v_add_u32 {v(t0)}, {s(sMW4)}, {v(vL)}")
    e(f"s_xor_b32 {s(sT0)}, {s(sMW4)}, 4096")
    e(f"v_add_u32 {v(t1)}, {s(sT0)}, {v(vL)}")
    e(f"v_add_u32 {v(t0)}, {SXCH}, {v(t0)}")
    e(f"v_add_u32 {v(t1)}, {SXCH}, {v(t1)}")
    tr0 = tr_wo(0)
    sxw = [parse(f"ds_write_b128 {v(t0)}, {v(SS + i * 4, 4)} offset:{i * 1024}") for i in range(4)]
    fill = [(i // 2, x) for i, x in enumerate(tr0[:4])] + [(4 + i, x) for i, x in enumerate(sxw)] + [(8 + i // 2, x) for i, x in enumerate(tr0[4:])]
    e(weave(own, fill))
    e(Wait(lg=0))
    e("s_barrier")
    e(stamp())
    SR = acc(6, 0)
    sxr = [parse(f"ds_read_b128 {v(SR + i * 4, 4)}, {v(t1)} offset:{i * 1024}") for i in range(4)]
    e(sxr)
    VL = {}
    def issue_v(sl, sg):
        m = [parse(f"s_add_u32 m0, {s(sMV)}, {sg * 4096}"), parse(f"s_add_u32 {s(sT0)}, {s(sVB + sl)}, {s(sVS + sg)}")]
        lds = [parse(f"buffer_load_dwordx4 {v(vKo + i)}, {s(SRD_V, 4)}, {s(sT0)} offen offset:{i * 1024} {cfg.nt_v} lds") for i in range(4)]
        VL[(sl, sg)] = lds
        return m, link(m, lds), []
    def issue_wo(p):
        out = []
        for hf in range(2):
            m, l, u = issue_wo_half(p, hf); WOL[(p, hf)] = l; out += seq(m, l, u)
        return out
    m, l, u = issue_v(0, 0); e(m + l)
    e(issue_wo(2))
    m, l, u = issue_v(0, 1); e(m + l)
    e(Wait(vm=WOL[(1, 0)] + WOL[(1, 1)]))
    tr1 = tr_wo(1); e(tr1)
    e(Wait(lg=sxr))
    for i in range(16): e(f"v_add_f32 {v(SO + i)}, {v(SO + i)}, {v(SR + i)}")
    e(Wait(lg=0))
    e(issue_wo(3))
    m, l, u = issue_v(0, 2); e(m + l)
    m, l, u = issue_v(0, 3); e(m + l)
    TM = SR
    def val(qt, kt, r): return SO + (kt * 2 + qt) * 4 + r
    mx = [TM, TM + 1]; cp = [TM + 2, TM + 3]; sm = [TM + 4, TM + 5]
    for qt in range(2): e(f"v_max3_f32 {v(mx[qt])}, {v(val(qt, 0, 0))}, {v(val(qt, 0, 1))}, {v(val(qt, 0, 2))}")
    for qt in range(2): e(f"v_max3_f32 {v(mx[qt])}, {v(mx[qt])}, {v(val(qt, 0, 3))}, {v(val(qt, 1, 0))}")
    for qt in range(2): e(f"v_max3_f32 {v(mx[qt])}, {v(mx[qt])}, {v(val(qt, 1, 1))}, {v(val(qt, 1, 2))}")
    for qt in range(2): e(f"v_max_f32 {v(mx[qt])}, {v(mx[qt])}, {v(val(qt, 1, 3))}")
    for sw in ("v_permlane16_swap_b32", "v_permlane32_swap_b32"):
        for qt in range(2): e(f"v_mov_b32 {v(cp[qt])}, {v(mx[qt])}")
        e("s_nop 0")
        for qt in range(2): e(f"{sw} {v(mx[qt])}, {v(cp[qt])}")
        for qt in range(2): e(f"v_max_f32 {v(mx[qt])}, {v(mx[qt])}, {v(cp[qt])}")
    for qt in range(2): e(f"v_mul_f32 {v(mx[qt])}, {s(sSC)}, {v(mx[qt])}")
    for kt in range(2):
        for r in range(4):
            for qt in range(2): e(f"v_fma_f32 {v(val(qt, kt, r))}, {v(val(qt, kt, r))}, {s(sSC)}, -{v(mx[qt])}")
    for kt in range(2):
        for r in range(4):
            for qt in range(2): e(f"v_exp_f32 {v(val(qt, kt, r))}, {v(val(qt, kt, r))}")
    for qt in range(2): e(f"v_add_f32 {v(sm[qt])}, {v(val(qt, 0, 0))}, {v(val(qt, 0, 1))}")
    for (kt, r) in [(0, 2), (0, 3), (1, 0), (1, 1), (1, 2), (1, 3)]:
        for qt in range(2): e(f"v_add_f32 {v(sm[qt])}, {v(sm[qt])}, {v(val(qt, kt, r))}")
    for sw in ("v_permlane16_swap_b32", "v_permlane32_swap_b32"):
        for qt in range(2): e(f"v_mov_b32 {v(cp[qt])}, {v(sm[qt])}")
        e("s_nop 0")
        for qt in range(2): e(f"{sw} {v(sm[qt])}, {v(cp[qt])}")
        for qt in range(2): e(f"v_add_f32 {v(sm[qt])}, {v(sm[qt])}, {v(cp[qt])}")
    for qt in range(2): e(f"v_rcp_f32 {v(sm[qt])}, {v(sm[qt])}")
    e("s_nop 0")
    for kt in range(2):
        for r in range(4):
            for qt in range(2): e(f"v_mul_f32 {v(val(qt, kt, r))}, {v(val(qt, kt, r))}, {v(sm[qt])}")
    PB = TM + 8
    for qt in range(2):
        for kt in range(2):
            for hh in range(2):
                e(f"v_cvt_pk_bf16_f32 {v(PB + qt * 4 + kt * 2 + hh)}, {v(val(qt, kt, 2 * hh))}, {v(val(qt, kt, 2 * hh + 1))}")
    PST = [parse(f"buffer_store_dwordx4 {v(PB + qt * 4, 4)}, {v(vL)}, {s(SRD_W, 4)}, {s(sPOFF)} offen offset:{qt * 1024} sc1") for qt in range(2)]
    e(PST)
    e("s_barrier")
    e(stamp())

    vVF = vA
    OUTA = 72
    PS = 88; PI = 104
    vXW = vKr; vXR = vKr + 1; vPR = vKr + 2; vFL = vKr + 3; vNV = vKr + 4; vFA = vKr + 5; vOA = vKr + 6
    e(f"v_add_u32 {v(vXW)}, {s(sMW4)}, {v(vL)}")
    e(f"s_lshr_b32 {s(sT0)}, {s(sW)}, 1")
    e(f"s_lshl_b32 {s(sT0)}, {s(sT0)}, 14")
    e(f"s_and_b32 {s(sT1)}, {s(sW)}, 1")
    e(f"s_lshl_b32 {s(sT1)}, {s(sT1)}, 11")
    e(f"s_add_u32 {s(sT0)}, {s(sT0)}, {s(sT1)}")
    e(f"v_add_u32 {v(vXR)}, {s(sT0)}, {v(vL)}")
    e(f"v_add_u32 {v(vPR)}, {PR}, {v(vL)}")
    e(f"v_mov_b32 {v(vNV)}, {s(sNONCE)}")
    e(f"v_and_b32 {v(vFA)}, 15, {v(vLANE)}")
    e(f"v_mul_u32_u24 {v(vOA)}, 1792, {v(vFA)}")
    e(f"v_lshlrev_b32 {v(vFA)}, 2, {v(vFA)}")
    e(f"v_lshrrev_b32 {v(t0)}, 4, {v(vLANE)}")
    e(f"v_lshl_add_u32 {v(vOA)}, {v(t0)}, 3, {v(vOA)}")
    e(f"v_sub_u32 {v(t0)}, {v(vLR)}, {v(vL)}")
    e(f"v_add_u32 {v(vOA)}, {v(vOA)}, {v(t0)}")

    def VW(sl, kt, t): return ACC + (sl % 2) * 64 + (t * 2 + kt) * 4
    def Vf(sl, ks, kt): return vVF + ((sl * 8 + ks) % 3) * 8 + kt * 4
    VRD = {}
    def readV(sl, ks):
        out = [parse(f"ds_read_b128 {v(Vf(sl, ks, kt), 4)}, {v(vRv + (ks & 1))} offset:{(ks >> 1) * 4096 + kt * 2048}") for kt in range(2)]
        VRD[(sl, ks)] = out
        return out
    def flag_store(off_expr_pre, sreg):
        blk = off_expr_pre + [parse("s_mov_b64 exec, 1"),
               parse(f"buffer_store_dword {v(vNV)}, off, {s(SRD_W, 4)}, {s(sreg)} sc1"),
               parse("s_mov_b64 exec, -1")]
        return blk
    uid = [0]
    def poll_check(vreg, mask, sreg_off_pre, sreg):
        uid[0] += 1; k = uid[0]
        txt = "\n".join([f"    s_mov_b32 {s(sT2)}, 0", f"L_poll{k}:",
            f"    v_cmp_ne_u32 vcc, {v(vreg)}, {v(vNV)}", "    s_nop 1",
            f"    s_and_b32 {s(sT3)}, vcc_lo, {mask}", f"    s_cbranch_scc0 L_pollok{k}",
            f"    s_add_u32 {s(sT2)}, {s(sT2)}, 1", f"    s_cmp_ge_u32 {s(sT2)}, 0x40000", f"    s_cbranch_scc1 L_pollok{k}",
            "    s_sleep 2"] + ["    " + x for x in sreg_off_pre] + [
            f"    buffer_load_dword {v(vreg)}, {v(vFA)}, {s(SRD_W, 4)}, {s(sreg)} offen sc1", "    s_waitcnt vmcnt(0)",
            f"    s_branch L_poll{k}", f"L_pollok{k}:"])
        return Ins(txt, "raw")

    e(Wait(vm=VL[(0, 0)]))
    e(readV(0, 0)); e(readV(0, 1))
    XW = {}; RST = {}; PLD = []; RLD = {}
    pf_pre = [f"s_lshr_b32 {s(sT1)}, {s(sME)}, 2", f"s_lshl_b32 {s(sT1)}, {s(sT1)}, 7", f"s_add_u32 {s(sT1)}, {s(sT1)}, {WS_PFLAG}"]
    rf_pre = [f"s_lshl_b32 {s(sT1)}, {s(sME)}, 7", f"s_add_u32 {s(sT1)}, {s(sT1)}, {WS_RFLAG}"]
    def post_cvt(sl):
        out = []
        for t in range(8):
            A0, B0 = VW(sl, 0, t), VW(sl, 1, t)
            out += [parse(f"v_cvt_pk_bf16_f32 {v(A0)}, {v(A0)}, {v(A0 + 1)}"), parse(f"v_cvt_pk_bf16_f32 {v(A0 + 1)}, {v(A0 + 2)}, {v(A0 + 3)}"),
                    parse(f"v_cvt_pk_bf16_f32 {v(A0 + 2)}, {v(B0)}, {v(B0 + 1)}"), parse(f"v_cvt_pk_bf16_f32 {v(A0 + 3)}, {v(B0 + 2)}, {v(B0 + 3)}")]
            w_ = parse(f"ds_write_b128 {v(vXW)}, {v(A0, 4)} offset:{(sl % 2) * 32768 + (t >> 2) * 16384 + (t & 3) * 1024}")
            out.append(w_); XW.setdefault(sl, []).append(w_)
        return out
    def pm_reads(sl):
        F = ACC + (sl % 2) * 64
        out = []
        for h in range(4):
            for p in range(2): out.append(parse(f"ds_read_b128 {v(F + h * 16 + p * 4, 4)}, {v(vXR)} offset:{(sl % 2) * 32768 + h * 4096 + p * 1024}"))
            for qt in range(2): out.append(parse(f"ds_read_b128 {v(F + h * 16 + 8 + qt * 4, 4)}, {v(vPR)} offset:{sl * 8192 + h * 2048 + qt * 1024}"))
        return out
    def pm_mfma(sl, h):
        F = ACC + (sl % 2) * 64
        out = []
        for p in range(2):
            for qt in range(2):
                d = OUTA + (p * 2 + qt) * 4
                c_in = v(d, 4) if h > 0 else ("0" if sl < 3 else v(PS + (p * 2 + qt) * 4, 4))
                out.append(parse(f"v_mfma_f32_16x16x32_bf16 {v(d, 4)}, {v(F + h * 16 + p * 4, 4)}, {v(F + h * 16 + 8 + qt * 4, 4)}, {c_in}"))
        return out
    def r_store(sl):
        pre = [parse(f"s_lshl_b32 {s(sT0)}, {s(sRDST + sl)}, 16"), parse(f"s_add_u32 {s(sT0)}, {s(sT0)}, {s(sMW4)}"),
               parse(f"s_add_u32 {s(sT0)}, {s(sT0)}, {WS_R + sl * 16384}")]
        st_ = [parse(f"buffer_store_dwordx4 {v(OUTA + i * 4, 4)}, {v(vLR)}, {s(SRD_W, 4)}, {s(sT0)} offen offset:{i * 1024} sc1") for i in range(4)]
        RST[sl] = st_
        return pre, link(pre, st_)
    def r_flag(sl):
        pre = [parse(f"s_lshl_b32 {s(sT0)}, {s(sRDST + sl)}, 7"), parse(f"s_lshl_b32 {s(sT1)}, {s(sW)}, 2"),
               parse(f"s_add_u32 {s(sT0)}, {s(sT0)}, {s(sT1)}"), parse(f"s_add_u32 {s(sT0)}, {s(sT0)}, {WS_RFLAG + sl * 16}")]
        return flag_store(pre, sT0)
    def r_load(k, dst):
        pre = [parse(f"s_lshl_b32 {s(sT0)}, {s(sME)}, 16"), parse(f"s_add_u32 {s(sT0)}, {s(sT0)}, {s(sMW4)}"),
               parse(f"s_add_u32 {s(sT0)}, {s(sT0)}, {WS_R + k * 16384}")]
        ld = [parse(f"buffer_load_dwordx4 {v(dst + i * 4, 4)}, {v(vLR)}, {s(SRD_W, 4)}, {s(sT0)} offen offset:{i * 1024} sc1") for i in range(4)]
        RLD[k] = ld
        return pre, link(pre, ld)
    def poll_load(pre):
        return [parse(x) for x in pre] + [parse(f"buffer_load_dword {v(vFL)}, {v(vFA)}, {s(SRD_W, 4)}, {s(sT1)} offen sc1")]
    sMASK = sKK
    e(f"s_lshl_b32 {s(sMASK)}, 1, {s(sW)}")

    TR = {0: tr0, 1: tr1}
    for sl in range(4):
        for ks in range(8):
            mf = [parse(f"v_mfma_f32_16x16x32_bf16 {v(VW(sl, kt, t), 4)}, {v(Vf(sl, ks, kt), 4)}, {a((ks * 8 + t) * 4, 4)}, " + ("0" if ks == 0 else v(VW(sl, kt, t), 4)))
                  for kt in range(2) for t in range(8)]
            head = []
            fill = []
            lgneed = list(VRD[(sl, ks)])
            if sl == 0: lgneed += TR[ks]
            head.append(Wait(lg=lgneed))
            g = 0
            if ks % 2 == 1 and sl < 3:
                m, l, u = issue_v(sl + 1, ks >> 1); fill += spread(g, m, l, u); g += 6
            nk = sl * 8 + ks + 2
            if nk < 32:
                nsl, nks = nk // 8, nk % 8
                grp = []
                if nks % 2 == 0: fill.append((8, Wait(vm=VL[(nsl, nks >> 1)])))
                for x in readV(nsl, nks): fill.append((9, x))
            if sl == 0 and ks + 2 <= 7:
                p = ks + 2
                head.append(Wait(vm=WOL[(p, 0)] + WOL[(p, 1)]))
                TR[p] = tr_wo(p)
                for i, x in enumerate(TR[p]): fill.append((i // 2, x))
                if p + 2 <= 7:
                    fill.append((11, [Wait(lg=TR[p])] + issue_wo(p + 2)))
            if sl == 0 and ks == 3:
                fill.append((12, Wait(vm=PST)))
                fill.append((12, flag_store([], sPFL)))
            if sl == 0 and ks == 7:
                pl = poll_load(pf_pre); POLLP = pl[-1]
                fill.append((12, pl))
            if sl == 1 and ks == 2:
                fill.append((12, Wait(vm=POLLP)))
                fill.append((12, poll_check(vFL, "0xffff", pf_pre, sT1)))
                pre = [parse(f"s_add_u32 {s(sT0)}, {s(sHQ)}, {s(sW)}"), parse(f"s_add_u32 {s(sT0)}, {s(sT0)}, 1"), parse(f"s_and_b32 {s(sT0)}, {s(sT0)}, 3"),
                       parse(f"s_lshl_b32 {s(sT0)}, {s(sT0)}, 13"), parse(f"s_lshr_b32 {s(sT1)}, {s(sME)}, 2"), parse(f"s_lshl_b32 {s(sT1)}, {s(sT1)}, 15"),
                       parse(f"s_add_u32 {s(sT0)}, {s(sT0)}, {s(sT1)}"), parse(f"s_add_u32 {s(sT0)}, {s(sT0)}, {WS_P}"),
                       parse(f"s_lshl_b32 {s(sT1)}, {s(sW)}, 13"), parse(f"s_add_u32 m0, {s(sT1)}, {PR}"), parse("s_nop 0")]
                blk = list(pre)
                for hf in range(2):
                    for i in range(4):
                        x = parse(f"buffer_load_dwordx4 {v(vL)}, {s(SRD_W, 4)}, {s(sT0)} offen offset:{i * 1024} sc1 lds"); PLD.append(x); blk.append(x)
                    if hf == 0: blk += [parse(f"s_add_u32 m0, m0, 4096"), parse(f"s_add_u32 {s(sT0)}, {s(sT0)}, 4096")]
                fill.append((13, blk))
            if sl >= 1:
                ps = sl - 1
                kb = 5 if sl == 1 else 2
                if ks == 0:
                    cvl = post_cvt(ps)
                    CV = cvl
                    for i, x in enumerate(cvl[:20]): fill.append((5 + i // 2, x))
                if ks == 1:
                    for i, x in enumerate(CV[20:]): fill.append((6 + i // 2, x))
                if ks == kb:
                    fill.append((2, Wait(vm=(PLD if sl == 1 else None), lg=XW[ps])))
                    fill.append((2, parse("s_barrier")))
                    PMR = pm_reads(ps)
                    for i, x in enumerate(PMR): fill.append((3 + i // 2, x))
                if ks == kb + 1:
                    extra = []
                    for h in range(4):
                        extra.append([Wait(lg=PMR[h * 4:h * 4 + 4])] + pm_mfma(ps, h))
                    for h in range(4): fill.append((3 + 4 * h, extra[h]))
                if ks == kb + 2:
                    pre, st_ = r_store(ps)
                    fill.append((10, pre))
                    for i, x in enumerate(st_): fill.append((11 + i, x))
                kf = kb + 4
                if ks == kf and kf < 8:
                    fill.append((12, Wait(vm=RST[ps]))); fill.append((12, r_flag(ps)))
            if sl == 2 and ks == 1:
                fill.append((12, Wait(vm=RST[0]))); fill.append((12, r_flag(0)))
            if sl == 3 and ks == 0:
                pl = poll_load(rf_pre); POLL0 = pl[-1]; fill.append((1, pl))
            if sl == 3 and ks == 3:
                fill.append((12, Wait(vm=POLL0)))
                fill.append((12, [parse(f"s_mul_i32 {s(sXOFF)}, {s(sMASK)}, 0x11"), poll_check(vFL, s(sXOFF), rf_pre, sT1)]))
                pre, ld = r_load(0, PS); fill.append((13, pre + ld))
                pre, ld = r_load(1, PI); fill.append((14, pre + ld))
            if sl == 3 and ks == 7:
                fill.append((2, Wait(vm=RLD[0] + RLD[1])))
                for i in range(16): fill.append((3 + i // 2, parse(f"v_add_f32 {v(PS + i)}, {v(PS + i)}, {v(PI + i)}")))
                pl = poll_load(rf_pre); POLL2 = pl[-1]; fill.append((12, pl))
            fill.sort(key=lambda x: x[0])
            e(head)
            e(weave(mf, fill))
        e(stamp())
    e("s_nop 4")
    cvl = post_cvt(3)
    e(cvl)
    e(Wait(vm=POLL2))
    e(f"s_lshl_b32 {s(sXOFF)}, {s(sMASK)}, 8")
    e(poll_check(vFL, s(sXOFF), rf_pre, sT1))
    pre, ld = r_load(2, PI); e(pre + ld)
    e(Wait(lg=XW[3]))
    e("s_barrier")
    PMR = pm_reads(3); e(PMR)
    for h in range(4):
        e(Wait(lg=PMR[h * 4:h * 4 + 4])); e(pm_mfma(3, h))
    e(stamp())
    e(f"s_mov_b32 {s(sT0)}, {16 * 1792}")
    e(Wait(vm=RLD[2]))
    e("s_nop 5")
    for i in range(16): e(f"v_add_f32 {v(OUTA + i)}, {v(OUTA + i)}, {v(PI + i)}")
    for p in range(2):
        for qt in range(2):
            d = OUTA + (p * 2 + qt) * 4
            e(f"v_cvt_pk_bf16_f32 {v(d)}, {v(d)}, {v(d + 1)}")
            e(f"v_cvt_pk_bf16_f32 {v(d + 1)}, {v(d + 2)}, {v(d + 3)}")
            e(f"buffer_store_dwordx2 {v(d, 2)}, {v(vOA)}, {s(SRD_OUT, 4)}, " + ("0" if qt == 0 else s(sT0)) + f" offen offset:{p * 32}")
    if cfg.stamps:
        e(Wait(vm=0))
        e(stamp())
        e(Wait(lg=0))
        e(f"s_lshl_b32 {s(sT0)}, {s(sBG)}, 2"); e(f"s_add_u32 {s(sT0)}, {s(sT0)}, {s(sC)}"); e(f"s_lshl_b32 {s(sT0)}, {s(sT0)}, 1")
        e(f"s_add_u32 {s(sT0)}, {s(sT0)}, {s(sBR1)}"); e(f"s_lshl_b32 {s(sT0)}, {s(sT0)}, 2"); e(f"s_add_u32 {s(sT0)}, {s(sT0)}, {s(sHQ)}")
        e(f"s_lshl_b32 {s(sT0)}, {s(sT0)}, 2"); e(f"s_add_u32 {s(sT0)}, {s(sT0)}, {s(sW)}"); e(f"s_lshl_b32 {s(sT0)}, {s(sT0)}, 9")
        e(f"s_add_u32 {s(sT0)}, {s(sT0)}, {WS_ST}")
        e("s_mov_b64 exec, 1")
        for k in range(nstamp[0]):
            e(f"v_mov_b32 v2, {s(STAMP0 + 2 * k)}"); e(f"v_mov_b32 v3, {s(STAMP0 + 2 * k + 1)}")
            e(f"buffer_store_dwordx2 v[2:3], off, {s(SRD_W, 4)}, {s(sT0)} offset:{k * 8}")
    P.raw("L_end:")
    e("s_endpgm")
    body = P.finalize()
    hdr = open("cdna_kernels/" + NAME + ".s.ref").read().split("\n")
    top = [l for l in hdr if l.startswith(";") and "@launch" not in l and "Override" not in l and "grid=ceil" not in l]
    out = top + ["; @launch grid=(256,1,1) block=(256,1,1) lds=163840",
                 '.amdgcn_target "amdgcn-amd-amdhsa--gfx950"', ".text", f".globl {NAME}_kernel", ".p2align 8",
                 f".type {NAME}_kernel,@function", f"{NAME}_kernel:"] + body + [
                 '.section .rodata,"a"', ".p2align 6", f".amdhsa_kernel {NAME}_kernel",
                 "  .amdhsa_next_free_vgpr 512", "  .amdhsa_next_free_sgpr 102", "  .amdhsa_accum_offset 256",
                 "  .amdhsa_group_segment_fixed_size 0", "  .amdhsa_kernarg_size 104", "  .amdhsa_user_sgpr_count 2",
                 "  .amdhsa_user_sgpr_kernarg_segment_ptr 1", "  .amdhsa_system_sgpr_workgroup_id_x 1",
                 "  .amdhsa_float_denorm_mode_32 3", ".end_amdhsa_kernel", ""]
    return "\n".join(out), nstamp[0]

if __name__ == "__main__":
    ap = argparse.ArgumentParser()
    ap.add_argument("out")
    ap.add_argument("--set", action="append", default=[])
    args = ap.parse_args()
    cfg = Cfg()
    for kv in args.set:
        k, val = kv.split("=", 1)
        try: val = eval(val)
        except Exception: pass
        setattr(cfg, k, val)
    txt, n = gen(cfg)
    open(args.out, "w").write(txt)
    print("wrote", args.out, "stamps", n, "lines", txt.count("\n"))
```

```python
import sys
NAME = "concat_heads__gqa_block_cached__mha_block_cached__near_ridge"
out, main, K, pol = sys.argv[1], sys.argv[2], int(sys.argv[3]), sys.argv[4].replace("def", "")
tens = [int(x) for x in sys.argv[5].split(",")]
SIZES = [917504, 4194304, 4194304, 3670016, 3670016, 917504, 8388608, 8388608, 3670016, 3670016]
src = open(main).read().split("\n")
hdr = [l for l in src if l.startswith(";") and "@launch" not in l]
body = [l for l in src if not l.startswith(";")]
L = ["s_cmp_ge_u32 s2, 0x100", "s_cbranch_scc1 LP_end", "v_lshlrev_b32 v1, 4, v0", "v_lshrrev_b32 v2, 6, v0", "s_nop 0", "v_readfirstlane_b32 s20, v2",
     "s_lshl_b32 s21, s20, 10"]
for i, t in enumerate(tens): L.append(f"s_load_dwordx2 s[{24+4*i}:{25+4*i}], s[0:1], {t*8}")
L += ["s_waitcnt lgkmcnt(0)", "s_barrier", "s_memrealtime s[4:5]"]
for i, t in enumerate(tens):
    per = (SIZES[t] // 256 + 4095) // 4096 * 4096
    L += [f"s_mov_b32 s{26+4*i}, {SIZES[t]}", f"s_mov_b32 s{27+4*i}, 0x20000", f"s_mul_i32 s22, s2, {SIZES[t] // 256}"]
    for k in range(per // 4096):
        L += [f"s_add_u32 m0, s21, {(k % 8) * 4096}", "s_nop 0", f"buffer_load_dwordx4 v1, s[{24+4*i}:{27+4*i}], s22 offen {pol} lds", "s_add_u32 s22, s22, 4096"]
L += ["s_waitcnt vmcnt(0)", "s_memrealtime s[6:7]", "s_waitcnt lgkmcnt(0)", "s_sub_u32 s8, s6, s4", "s_min_u32 s8, s8, 2000", f"s_mul_i32 s8, s8, {K}",
      "LP_spin:", "s_memrealtime s[10:11]", "s_waitcnt lgkmcnt(0)", "s_sub_u32 s10, s10, s6", "s_cmp_lt_u32 s10, s8", "s_cbranch_scc1 LP_spin", "LP_end:", "s_endpgm"]
txt = hdr + ["; @launch kernel=probe_kernel grid=(256,1,1) block=(256,1,1) lds=163840", f"; @launch kernel={NAME}_kernel grid=(256,1,1) block=(256,1,1) lds=163840"]
i0 = body.index(".text")
txt += body[:i0 + 1] + [".globl probe_kernel", ".p2align 8", ".type probe_kernel,@function", "probe_kernel:"] + L + body[i0 + 1:]
txt += [".p2align 6", ".amdhsa_kernel probe_kernel", "  .amdhsa_next_free_vgpr 8", "  .amdhsa_next_free_sgpr 64", "  .amdhsa_accum_offset 8",
        "  .amdhsa_group_segment_fixed_size 0", "  .amdhsa_kernarg_size 104", "  .amdhsa_user_sgpr_count 2", "  .amdhsa_user_sgpr_kernarg_segment_ptr 1",
        "  .amdhsa_system_sgpr_workgroup_id_x 1", ".end_amdhsa_kernel", ""]
open(out, "w").write("\n".join(txt))
```

```python
import sys
NAME = "concat_heads__gqa_block_cached__mha_block_cached__near_ridge"
out, main, K, pol = sys.argv[1], sys.argv[2], int(sys.argv[3]), sys.argv[4].replace("def", "")
tens = [int(x) for x in sys.argv[5].split(",")]
SIZES = [917504, 4194304, 4194304, 3670016, 3670016, 917504, 8388608, 8388608, 3670016, 3670016, 1835008, 256, 268435456]
LAT = len(sys.argv) > 6
OFF = int(sys.argv[7]) if len(sys.argv) > 7 else 0
src = open(main).read().split("\n")
hdr = [l for l in src if l.startswith(";") and "@launch" not in l]
body = [l for l in src if not l.startswith(";")]
L = ["s_cmp_ge_u32 s2, 0x100", "s_cbranch_scc1 LP_end", "v_lshlrev_b32 v1, 4, v0", "v_lshrrev_b32 v2, 6, v0", "s_nop 0", "v_readfirstlane_b32 s20, v2",
     "s_lshl_b32 s21, s20, 10"]
for i, t in enumerate(tens): L.append(f"s_load_dwordx2 s[{24+4*i}:{25+4*i}], s[0:1], {t*8}")
L += ["s_waitcnt lgkmcnt(0)", "s_barrier", "s_memrealtime s[4:5]"]
for i, t in enumerate(tens):
    per = (SIZES[t] // 256 + 4095) // 4096 * 4096
    L += [f"s_mov_b32 s{26+4*i}, {SIZES[t]}", f"s_mov_b32 s{27+4*i}, 0x20000", f"s_mul_i32 s22, s2, {min(SIZES[t] // 256, 32768)}", f"s_add_u32 s22, s22, {OFF}"]
    if LAT: per = 3 * 4096
    for k in range(per // 4096):
        L += [f"s_add_u32 m0, s21, {(k % 8) * 4096}", "s_nop 0", f"buffer_load_dwordx4 v1, s[{24+4*i}:{27+4*i}], s22 offen {pol} lds", "s_add_u32 s22, s22, 4096"] + (["s_waitcnt vmcnt(0)"] if LAT else [])
L += ["s_waitcnt vmcnt(0)", "s_memrealtime s[6:7]", "s_waitcnt lgkmcnt(0)", "s_sub_u32 s8, s6, s4", "s_min_u32 s8, s8, 2000", f"s_mul_i32 s8, s8, {K}",
      "LP_spin:", "s_memrealtime s[10:11]", "s_waitcnt lgkmcnt(0)", "s_sub_u32 s10, s10, s6", "s_cmp_lt_u32 s10, s8", "s_cbranch_scc1 LP_spin", "LP_end:", "s_endpgm"]
txt = hdr + ["; @launch kernel=probe_kernel grid=(256,1,1) block=(256,1,1) lds=163840", f"; @launch kernel={NAME}_kernel grid=(256,1,1) block=(256,1,1) lds=163840"]
i0 = body.index(".text")
txt += body[:i0 + 1] + [".globl probe_kernel", ".p2align 8", ".type probe_kernel,@function", "probe_kernel:"] + L + body[i0 + 1:]
txt += [".p2align 6", ".amdhsa_kernel probe_kernel", "  .amdhsa_next_free_vgpr 8", "  .amdhsa_next_free_sgpr 64", "  .amdhsa_accum_offset 8",
        "  .amdhsa_group_segment_fixed_size 0", "  .amdhsa_kernarg_size 104", "  .amdhsa_user_sgpr_count 2", "  .amdhsa_user_sgpr_kernarg_segment_ptr 1",
        "  .amdhsa_system_sgpr_workgroup_id_x 1", ".end_amdhsa_kernel", ""]
open(out, "w").write("\n".join(txt))
```
